```python
import torch

def _softmax(x, axis=-1):
    return torch.softmax(x, dim=axis)
def _gelu(x):
    return torch.nn.functional.gelu(x, approximate="tanh")
def _silu(x):
    return torch.nn.functional.silu(x)
def _sigmoid(x):
    return torch.sigmoid(x)
def _layernorm(x, axis=-1, eps=1e-5):
    m = x.mean(dim=axis, keepdim=True)
    v = x.var(dim=axis, keepdim=True, unbiased=False)
    return (x - m) / torch.sqrt(v + eps)
def _scatter_add(tgt, idx, src, axis=0):
    return tgt.clone().index_add_(axis, idx, src)
def _segment_sum(src, seg, n):
    out = torch.zeros((n,) + src.shape[1:], dtype=src.dtype)
    return out.index_add_(0, seg, src)
def _pad(x, pw):
    flat = tuple(v for pair in reversed(pw) for v in pair)
    return torch.nn.functional.pad(x, flat)

kernel_name = 'gated_mix__grouped_kv_mqa__glu_gated_swiglu__prompt'

def setup_inputs():

    _w = (lambda a: (lambda t: t.to(torch.bfloat16) if t.is_floating_point() else t)(torch.as_tensor(a)))
    def _A_setup():
        B, S, D, H = 1, 2048, 640, 32
        Dh = D // H
        return {
            "x": _w((lambda *s: torch.randn(*s, dtype=torch.bfloat16) * 0.05)(B, S, D)),
            "wq": _w((lambda *s: torch.randn(*s, dtype=torch.bfloat16) * 0.8)(D, H * Dh)),
            "wk": _w((lambda *s: torch.randn(*s, dtype=torch.bfloat16) * 0.8)(D, Dh)),
            "wv": _w((lambda *s: torch.randn(*s, dtype=torch.bfloat16) * 0.05)(D, Dh)),
            "wo": _w((lambda *s: torch.randn(*s, dtype=torch.bfloat16) * 0.05)(H * Dh, D)),
        }
    _A_in = _A_setup()

    def _B_setup():
        B, S, D, F = 1, 2048, 640, 1536
        return {
            "x": _w((lambda *s: torch.randn(*s, dtype=torch.bfloat16) * 0.05)(B, S, D)),
            "w1": _w((lambda *s: torch.randn(*s, dtype=torch.bfloat16) * 0.8)(D, F) * (2.0 / D) ** 0.5),
            "w3": _w((lambda *s: torch.randn(*s, dtype=torch.bfloat16) * 0.8)(D, F) * (2.0 / D) ** 0.5),
            "w2": _w((lambda *s: torch.randn(*s, dtype=torch.bfloat16) * 0.8)(F, D) * (2.0 / F) ** 0.5),
        }
    _B_in = _B_setup()

    return {
        "A_x": _A_in["x"],
        "A_wq": _A_in["wq"],
        "A_wk": _A_in["wk"],
        "A_wv": _A_in["wv"],
        "A_wo": _A_in["wo"],
        "B_x": _B_in["x"],
        "B_w1": _B_in["w1"],
        "B_w3": _B_in["w3"],
        "B_w2": _B_in["w2"],
        "gate_w": _w((lambda *s: torch.randn(*s, dtype=torch.bfloat16) * 0.05)(640) * 16.0),
    }

def reference(A_x, A_wq, A_wk, A_wv, A_wo, B_x, B_w1, B_w3, B_w2, gate_w):
    def _A_ref(x, wq, wk, wv, wo):
        B, S, D = x.shape
        H = 32
        Dh = D // H
        q = (lambda x, *d: x.permute(*d))((x @ wq).reshape(B, S, H, Dh), 0, 2, 1, 3)
        k = x @ wk
        v = x @ wv
        scores = torch.einsum("bhqd,bkd->bhqk", q, k) * (Dh ** -0.5)
        p = _softmax(scores, axis=-1)
        o = torch.einsum("bhqk,bkd->bhqd", p, v)
        return (lambda x, *d: x.permute(*d))(o, 0, 2, 1, 3).reshape(B, S, H * Dh) @ wo

    def _B_ref(x, w1, w3, w2):
        gate = torch.einsum("bsd,df->bsf", x, w1)
        up = torch.einsum("bsd,df->bsf", x, w3)
        h = _silu(gate) * up
        out = torch.einsum("bsf,fd->bsd", h, w2)
        return out

    x = A_x
    g = _sigmoid((x * gate_w).sum(-1, keepdims=True))
    a = _A_ref(x, A_wq, A_wk, A_wv, A_wo)
    b = _B_ref(x, B_w1, B_w3, B_w2)
    return g * a + (1 - g) * b
```

```python
class Asm:
    def __init__(self):
        self.lines = []
        self._uid = 0
    def __call__(self, s):
        for ln in s.split("\n"):
            ln = ln.strip()
            if ln:
                self.lines.append("  " + ln)
    def c(self, s):
        self.lines.append("  ; " + s)
    def label(self, l):
        self.lines.append(l + ":")
    def raw(self, s):
        self.lines.append(s)
    def uid(self, p="L"):
        self._uid += 1
        return f"{p}_{self._uid}"
    def text(self):
        return "\n".join(self.lines) + "\n"

def v(i): return f"v{i}"
def vr(i, n): return f"v[{i}:{i+n-1}]"
def a(i): return f"a{i}"
def ar(i, n): return f"a[{i}:{i+n-1}]"
def s(i): return f"s{i}"
def sr(i, n): return f"s[{i}:{i+n-1}]"

KA = dict(x=0, wq=8, wk=16, wv=24, wo=32, bx=40, w1=48, w3=56, w2=64, gw=72, out=80, dbg=88, ws=96)

WS_QF  = 0x000000
WS_KVF = 0x280000
WS_KN  = 0x2B4000
WS_G   = 0x2B5000
WS_HF  = 0x300000
WS_OF  = 0x900000
WS_W2F = 0xC00000
WS_WOF = 0xDE0000
WS_SIZE = 0x1000000
KVB = 3328

def srd(A, d, base, size):
    A(f"s_mov_b32 s{d}, s{base}")
    A(f"s_and_b32 s{d+1}, s{base+1}, 0xffff")
    A(f"s_mov_b32 s{d+2}, {size}")
    A(f"s_mov_b32 s{d+3}, 0x20000")

def kdesc(name, vgpr, sgpr=102, agpr=0):
    acc = (vgpr + 3) // 4 * 4
    return f""".p2align 6
.amdhsa_kernel {name}
  .amdhsa_next_free_vgpr {acc + agpr}
  .amdhsa_next_free_sgpr {sgpr}
  .amdhsa_accum_offset {acc}
  .amdhsa_group_segment_fixed_size 0
  .amdhsa_kernarg_size 104
  .amdhsa_user_sgpr_count 2
  .amdhsa_user_sgpr_kernarg_segment_ptr 1
  .amdhsa_system_sgpr_workgroup_id_x 1
  .amdhsa_float_denorm_mode_32 3
  .amdhsa_float_denorm_mode_16_64 3
.end_amdhsa_kernel
"""
def khead(name):
    return f""".globl {name}
.p2align 8
.type {name},@function
{name}:
"""


import os
PROF = int(os.environ.get("PROF", "0"))
WS_PROF = 0xF00000
class Stamps:
    def __init__(self, A, base, n=8):
        self.A, self.base, self.n = A, base, n
    def stamp(self, i):
        if PROF:
            self.A(f"s_memtime s[{self.base+2*i}:{self.base+2*i+1}]")
    def dump(self, ws_srd, wg="s2", wave="s20", vt=60, koff=0):
        if not PROF: return
        A = self.A
        A("s_waitcnt lgkmcnt(0)")
        A(f"s_lshl_b32 s3, {wg}, 2")
        A(f"s_add_u32 s3, s3, {wave}")
        A("s_lshl_b32 s3, s3, 6")
        A(f"s_add_u32 s3, s3, {WS_PROF + koff}")
        A(f"v_mov_b32 v{vt}, 0")
        for i in range(self.n):
            A(f"v_mov_b32 v{vt+1}, s{self.base+2*i}")
            A(f"buffer_store_dword v{vt+1}, v{vt}, s[{ws_srd}:{ws_srd+3}], s3 offen offset:{4*i}")
            A("s_nop 1")
```

```python
from asmlib import *

LOG2E = 1.4426950408889634
QSCALE = (20.0 ** -0.5) * LOG2E
import struct
def f2u(x): return struct.unpack("<I", struct.pack("<f", x))[0]

K1_LDS = 147456

def k1():
    A = Asm()
    N = "k1_kernel"
    A.raw(khead(N))
    A("s_cmp_ge_u32 s2, 256")
    A(f"s_cbranch_scc1 {N}_end")
    A("s_load_dwordx16 s[40:55], s[0:1], 0")
    A("s_load_dwordx4 s[56:59], s[0:1], 64")
    A("s_load_dwordx2 s[60:61], s[0:1], 96")
    ST = Stamps(A, 88, 7)
    ST.stamp(0)
    P = dict(x=40, wq=42, wk=44, wv=46, wo=48, w1=52, w3=54, w2=56, gw=58, ws=60)
    A("v_lshrrev_b32 v1, 6, v0")
    A("v_and_b32 v63, 63, v0")
    A("v_readfirstlane_b32 s20, v1")
    A("s_and_b32 s3, s2, 7")
    A("s_lshr_b32 s62, s2, 3")
    A("s_and_b32 s63, s3, 1")
    A("s_lshr_b32 s64, s3, 1")
    A("s_and_b32 s65, s62, 3")
    A("s_lshl_b32 s21, s63, 2")
    A("s_add_u32 s21, s21, s65")
    A("s_lshr_b32 s66, s62, 2")
    A("s_waitcnt lgkmcnt(0)")
    ST.stamp(1)
    srd(A, 16, P['ws'], WS_SIZE)
    srd(A, 4, P['x'], 2621440)
    A("s_mul_i32 s22, s64, 7")
    A("s_add_u32 s22, s22, 1")
    A("s_cmp_eq_u32 s64, 0")
    A("s_cselect_b32 s22, 0, s22")
    A("s_add_u32 s22, s22, s66")
    A("s_cmp_eq_u32 s66, 7")
    A("s_cselect_b32 s67, 1, 0")
    A("s_cmp_lg_u32 s64, 0")
    A("s_cselect_b32 s68, 1, 0")
    A("s_and_b32 s67, s67, s68")
    A("s_cmp_lg_u32 s67, 0")
    A(f"s_cbranch_scc1 {N}_spare")

    A("s_cmp_lt_u32 s22, 5")
    A("s_cselect_b32 s69, 1, 0")
    A(f"s_cbranch_scc0 {N}_ffn_setup")
    A("s_lshl_b32 s70, s22, 8")
    A(f"s_add_u32 s8, s{P['wq']}, s70")
    A(f"s_addc_u32 s9, s{P['wq']+1}, 0")
    A("s_add_u32 s12, s8, 128")
    A("s_addc_u32 s13, s9, 0")
    A("s_mov_b32 s23, 1280")
    A(f"s_branch {N}_setup_done")
    A.label(f"{N}_ffn_setup")
    A("s_sub_u32 s70, s22, 5")
    A("s_lshl_b32 s70, s70, 7")
    A(f"s_add_u32 s8, s{P['w1']}, s70")
    A(f"s_addc_u32 s9, s{P['w1']+1}, 0")
    A(f"s_add_u32 s12, s{P['w3']}, s70")
    A(f"s_addc_u32 s13, s{P['w3']+1}, 0")
    A("s_mov_b32 s23, 3072")
    A.label(f"{N}_setup_done")
    A("s_and_b32 s9, s9, 0xffff")
    A("s_and_b32 s13, s13, 0xffff")
    A("s_lshl_b32 s38, s23, 6")
    A("s_mov_b32 s10, s38")
    A("s_mov_b32 s11, 0x20000")
    A("s_mov_b32 s14, s38")
    A("s_mov_b32 s15, 0x20000")
    A("s_lshr_b32 s70, s20, 1")
    A("s_cmp_eq_u32 s70, 0")
    A("s_cselect_b32 s72, s8, s12")
    A("s_cselect_b32 s73, s9, s13")
    A("s_mov_b32 s74, s38")
    A("s_mov_b32 s75, 0x20000")
    A("s_lshl_b32 s24, s20, 13")
    A("s_lshl_b32 s25, s70, 13")
    A("s_and_b32 s71, s20, 1")
    A("s_lshl_b32 s39, s71, 12")
    A("s_add_u32 s25, s25, s39")
    A("s_add_u32 s25, s25, 98304")
    A("s_lshl_b32 s26, s21, 8")
    A("s_lshl_b32 s39, s20, 6")
    A("s_add_u32 s26, s26, s39")
    A("s_mul_i32 s26, s26, 1280")
    for j in range(1, 8):
        A(f"s_add_u32 s{26+j}, s26, {j*8*1280}")
    A("s_lshl_b32 s39, s71, 5")
    A("s_mul_i32 s34, s39, s23")
    A("s_lshl_b32 s39, s23, 3")
    for j in range(1, 4):
        A(f"s_add_u32 s{34+j}, s{34+j-1}, s39")
    lane = 63
    A(f"v_lshrrev_b32 v14, 3, v{lane}")
    A(f"v_and_b32 v15, 7, v{lane}")
    A(f"v_lshrrev_b32 v16, 4, v{lane}")
    A("s_movk_i32 s39, 1280")
    A("v_mul_lo_u32 v17, v14, s39")
    A("v_xor_b32 v18, v15, v16")
    A("v_lshl_add_u32 v11, v18, 4, v17")
    A("v_xor_b32 v18, 4, v18")
    A("v_lshl_add_u32 v12, v18, 4, v17")
    A("v_mul_lo_u32 v17, v14, s23")
    A("v_and_b32 v18, 1, v16")
    A("v_lshlrev_b32 v18, 2, v18")
    A("v_xor_b32 v18, v15, v18")
    A("v_lshl_add_u32 v13, v18, 4, v17")
    def dma_x(stage, j):
        A(f"s_add_u32 m0, s24, {stage*32768 + j*1024}")
        A("s_nop 0")
        A(f"buffer_load_dwordx4 v{11 + (j&1)}, s[4:7], s{26+j} offen lds")
    def dma_w(stage, j):
        A(f"s_add_u32 m0, s25, {stage*16384 + j*1024}")
        A("s_nop 0")
        A(f"buffer_load_dwordx4 v13, s[72:75], s{34+j} offen lds")
    def bump():
        A("s_add_u32 s4, s4, 128")
        A("s_addc_u32 s5, s5, 0")
        A("s_add_u32 s72, s72, s38")
        A("s_addc_u32 s73, s73, 0")
    def dma_list(stage):
        return [("x", stage, j) for j in range(8)] + [("w", stage, j) for j in range(4)]
    def dma(item):
        (dma_x if item[0] == "x" else dma_w)(item[1], item[2])
    ST.stamp(2)
    for blk in range(3):
        L = dma_list(blk)
        for it in [L[8], L[0], L[1], L[9], L[2], L[3], L[10], L[4], L[5], L[11], L[6], L[7]]:
            dma(it)
        bump()
    ST.stamp(3)
    wr, wc = 76, 77
    A(f"s_lshr_b32 s{wr}, s20, 1")
    A(f"s_and_b32 s{wc}, s20, 1")
    A(f"v_and_b32 v14, 31, v{lane}")
    A(f"v_lshrrev_b32 v15, 5, v{lane}")
    A("v_lshrrev_b32 v16, 1, v14")
    A("v_and_b32 v16, 7, v16")
    A("v_xor_b32 v16, v16, v15")
    A(f"s_lshl_b32 s39, s{wr}, 7")
    A("v_add_u32 v17, s39, v14")
    A("v_lshlrev_b32 v17, 7, v17")
    for ks in range(4):
        A(f"v_xor_b32 v18, {2*ks}, v16")
        A(f"v_lshl_add_u32 v{2+ks}, v18, 4, v17")
        A(f"v_add_u32 v{6+ks}, 0x10000, v{2+ks}")
    A(f"v_and_b32 v14, 15, v{lane}")
    A("v_lshrrev_b32 v16, 2, v14")
    A("v_and_b32 v17, 3, v14")
    A(f"v_bfe_u32 v18, v{lane}, 4, 1")
    A("v_lshlrev_b32 v18, 1, v18")
    A("v_lshrrev_b32 v19, 1, v17")
    A("v_add_u32 v18, v18, v19")
    A(f"s_lshl_b32 s39, s{wc}, 2")
    A("v_add_u32 v18, s39, v18")
    A("v_bfe_u32 v19, v16, 1, 1")
    A("v_lshlrev_b32 v19, 2, v19")
    A("v_xor_b32 v18, v18, v19")
    A("v_lshlrev_b32 v18, 4, v18")
    A("v_and_b32 v17, 1, v17")
    A("v_lshl_add_u32 v18, v17, 3, v18")
    A("v_lshl_add_u32 v16, v15, 3, v16")
    A("v_lshl_add_u32 v18, v16, 7, v18")
    A("v_add_u32 v10, 98304, v18")
    ACC = 128
    def acc(rt, mh): return ACC + (rt*2+mh)*16
    for r in range(128):
        A(f"v_mov_b32 v{ACC+r}, 0")
    FB = 64
    def fx(b, rt): return FB + 24*b + 4*rt
    def fw(b, mh): return FB + 24*b + 16 + 4*mh
    def rd_list(kb, ks, b):
        st = kb % 3
        xs = []
        def rx(rt):
            if st < 2: return f"ds_read_b128 {vr(fx(b,rt),4)}, v{2+ks} offset:{st*32768 + rt*4096}"
            return f"ds_read_b128 {vr(fx(b,rt),4)}, v{6+ks} offset:{rt*4096}"
        def rw(mh, rd):
            return f"ds_read_b64_tr_b16 {vr(fw(b,mh)+2*rd,2)}, v10 offset:{st*16384 + mh*8192 + ks*2048 + rd*512}"
        return [rw(0,0), rw(0,1), rx(0), rw(1,0), rw(1,1), rx(1), rx(2), rx(3)]
    A("s_waitcnt vmcnt(24)")
    A("s_barrier")
    ST.stamp(4)
    for x in rd_list(0, 0, 0): A(x)
    for g in range(40):
        kb, ks = divmod(g, 4)
        b = g % 2
        A.c(f"---- k-step {g}")
        A("s_waitcnt lgkmcnt(0)")
        if ks == 3 and kb < 9:
            A(f"s_waitcnt vmcnt({12 if kb < 8 else 0})")
            A("s_barrier")
        nxt = rd_list(*divmod(g+1, 4), 1-b) if g < 39 else []
        items = []
        if ks == 3: tb, part = kb + 3, 0
        else: tb, part = kb + 2, ks + 1
        if tb <= 9 and tb >= 3:
            L = dma_list(tb % 3)
            L = [L[8], L[0], L[1], L[9], L[2], L[3], L[10], L[4], L[5], L[11], L[6], L[7]]
            items = L[3*part:3*part+3]
        order = [(0,0),(0,1),(1,0),(1,1),(2,0),(2,1),(3,0),(3,1)]
        for i, (rt, mh) in enumerate(order):
            A(f"v_mfma_f32_32x32x16_bf16 {vr(acc(rt,mh),16)}, {vr(fw(b,mh),4)}, {vr(fx(b,rt),4)}, {vr(acc(rt,mh),16)}")
            if i < 4 and nxt:
                A(nxt[2*i]); A(nxt[2*i+1])
            if 4 <= i < 7 and items:
                dma(items[i-4])
        if items and part == 3:
            bump()
    A("s_nop 15")
    ST.stamp(5)
    A("s_cmp_lg_u32 s69, 0")
    A(f"s_cbranch_scc1 {N}_q_epi")

    A(f"v_and_b32 v14, 31, v{lane}")
    A("v_lshrrev_b32 v16, 4, v14")
    A("s_mov_b32 s39, 49152")
    A("v_mul_lo_u32 v16, v16, s39")
    A("v_and_b32 v17, 15, v14")
    A("v_lshl_add_u32 v16, v17, 4, v16")
    A("v_lshl_add_u32 v16, v15, 9, v16")
    A("s_lshl_b32 s78, s21, 3")
    A(f"s_lshl_b32 s39, s{wr}, 2")
    A("s_add_u32 s78, s78, s39")
    A("s_mul_i32 s78, s78, 98304")
    A("s_sub_u32 s79, s22, 5")
    A("s_lshl_b32 s79, s79, 1")
    A(f"s_add_u32 s79, s79, s{wc}")
    A("s_lshl_b32 s79, s79, 10")
    A("s_add_u32 s78, s78, s79")
    A(f"s_add_u32 s78, s78, {WS_HF}")
    A(f"s_mov_b32 s80, {f2u(-LOG2E)}")
    A("s_mov_b32 s81, s80")
    A("s_mov_b32 s82, 1.0")
    A("s_mov_b32 s83, 1.0")
    for rt in range(4):
        g0, u0 = acc(rt,0), acc(rt,1)
        T = 20
        for r in range(0, 16, 2):
            A(f"v_pk_mul_f32 {vr(T+r,2)}, {vr(g0+r,2)}, s[80:81]")
        for r in range(16):
            A(f"v_exp_f32 v{T+r}, v{T+r}")
        for r in range(0, 16, 2):
            A(f"v_pk_add_f32 {vr(T+r,2)}, {vr(T+r,2)}, s[82:83]")
        for r in range(16):
            A(f"v_rcp_f32 v{T+r}, v{T+r}")
        for r in range(0, 16, 2):
            A(f"v_pk_mul_f32 {vr(g0+r,2)}, {vr(g0+r,2)}, {vr(u0+r,2)}")
        for r in range(0, 16, 2):
            A(f"v_pk_mul_f32 {vr(T+r,2)}, {vr(T+r,2)}, {vr(g0+r,2)}")
        O = 40 + 8*(rt%2)
        for r in range(0, 16, 2):
            A(f"v_cvt_pk_bf16_f32 v{O+r//2}, v{T+r}, v{T+r+1}")
        A(f"buffer_store_dwordx4 {vr(O,4)}, v16, s[16:19], s78 offen")
        A(f"buffer_store_dwordx4 {vr(O+4,4)}, v16, s[16:19], s78 offen offset:256")
        if rt < 3:
            A("s_add_u32 s78, s78, 98304")
    A(f"s_branch {N}_fin")

    A.label(f"{N}_q_epi")
    A(f"v_and_b32 v14, 31, v{lane}")
    A("s_lshl_b32 s78, s22, 5")
    A(f"s_lshl_b32 s39, s{wc}, 3")
    A("s_add_u32 s78, s78, s39")
    A("v_add_u32 v16, s78, v15")
    A("s_lshl_b32 s79, s21, 3")
    A(f"s_lshl_b32 s39, s{wr}, 2")
    A("s_add_u32 s79, s79, s39")
    A("s_mul_i32 s79, s79, 1280")
    A(f"s_add_u32 s79, s79, {WS_QF}")
    A("s_mov_b32 s84, 52429")
    A("s_mov_b32 s85, 81920")
    for mh in range(2):
        for gi in range(4):
            d = 20 + mh*4 + gi
            A(f"v_add_u32 v17, {16*mh + 2*gi}, v16")
            A("v_mul_u32_u24 v18, s84, v17")
            A("v_lshrrev_b32 v18, 18, v18")
            A("v_mul_u32_u24 v19, 5, v18")
            A("v_sub_u32 v19, v17, v19")
            A("v_mul_lo_u32 v18, v18, s85")
            A("v_and_b32 v28, 1, v19")
            A("v_lshl_add_u32 v28, v28, 5, v14")
            A("v_lshlrev_b32 v28, 4, v28")
            A("v_lshrrev_b32 v29, 1, v19")
            A("v_lshl_add_u32 v28, v29, 3, v28")
            A("v_lshlrev_b32 v29, 3, v14")
            A("v_add_u32 v29, 1024, v29")
            A("v_cmp_eq_u32 vcc, 4, v19")
            A("s_nop 1")
            A("v_cndmask_b32 v28, v28, v29, vcc")
            A(f"v_add_u32 v{d}, v18, v28")
    A(f"s_mov_b32 s80, {f2u(QSCALE)}")
    A("s_mov_b32 s81, s80")
    for rt in range(4):
        for mh in range(2):
            a0 = acc(rt, mh)
            for r in range(0, 16, 2):
                A(f"v_pk_mul_f32 {vr(a0+r,2)}, {vr(a0+r,2)}, s[80:81]")
            O = 32 + 8*mh
            for r in range(0, 16, 2):
                A(f"v_cvt_pk_bf16_f32 v{O+r//2}, v{a0+r}, v{a0+r+1}")
            for gi in range(4):
                A(f"buffer_store_dwordx2 {vr(O+2*gi,2)}, v{20+mh*4+gi}, s[16:19], s79 offen")
        if rt < 3:
            A("s_add_u32 s79, s79, 1280")
    A(f"s_branch {N}_fin")

    A.label(f"{N}_spare")
    A("s_sub_u32 s22, s3, 2")
    A("s_lshl_b32 s22, s22, 2")
    A("s_add_u32 s22, s22, s65")
    A("s_lshl_b32 s21, s22, 2")
    A("s_add_u32 s21, s21, s20")
    A("s_cmp_ge_u32 s22, 16")
    A(f"s_cbranch_scc1 {N}_xform")
    kv_role(A, N, P, ST)
    A.label(f"{N}_xform")
    ST.stamp(5)
    xform_role(A, N, P)
    A.label(f"{N}_fin")
    if PROF:
        A("s_waitcnt vmcnt(0)")
        ST.stamp(6)
        ST.dump(16)
    A.label(f"{N}_end")
    A("s_endpgm")
    return A.text(), kdesc(N, 256, 102)

def kv_role(A, N, P, ST):
    lane = 63
    srd(A, 8, P['wk'], 25600)
    srd(A, 12, P['wv'], 25600)
    srd(A, 72, P['gw'], 1280)
    A("v_lshlrev_b32 v17, 3, v0")
    WR = [224 + 4*j for j in range(8)] + [28 + 4*j for j in range(5)]
    for j in range(13):
        A(f"s_movk_i32 s39, {2048*j}")
        A(f"buffer_load_dwordx2 {vr(WR[j],2)}, v17, s[8:11], s39 offen")
        A(f"buffer_load_dwordx2 {vr(WR[j]+2,2)}, v17, s[12:15], s39 offen")
    A("v_lshlrev_b32 v18, 1, v0")
    for j in range(3):
        A(f"buffer_load_ushort v{48+j}, v18, s[72:75], 0 offen offset:{512*j}")
    A(f"v_and_b32 v14, 31, v{lane}")
    A(f"v_lshrrev_b32 v15, 5, v{lane}")
    A("s_lshl_b32 s39, s21, 5")
    A("v_add_u32 v16, s39, v14")
    A("s_movk_i32 s39, 1280")
    A("v_mul_lo_u32 v16, v16, s39")
    A("v_lshl_add_u32 v16, v15, 4, v16")
    XF = 64
    for ks in range(40):
        A(f"buffer_load_dwordx4 {vr(XF+4*ks,4)}, v16, s[4:7], 0 offen offset:{ks*32}")
    A("s_mov_b32 s84, 52429")
    AD = [51 + j for j in range(12)] + [2]
    for j in range(13):
        A(f"v_add_u32 v17, {256*j}, v0")
        A("v_mul_u32_u24 v18, s84, v17")
        A("v_lshrrev_b32 v18, 18, v18")
        A("v_mul_u32_u24 v19, 5, v18")
        A("v_sub_u32 v19, v17, v19")
        A("v_bfe_u32 v24, v18, 1, 1")
        A("v_lshlrev_b32 v24, 2, v24")
        A("v_lshrrev_b32 v25, 1, v19")
        A("v_xor_b32 v26, v25, v24")
        A("v_lshlrev_b32 v26, 4, v26")
        A("v_and_b32 v19, 1, v19")
        A("v_lshl_add_u32 v26, v19, 3, v26")
        A(f"v_lshl_add_u32 v{AD[j]}, v18, 7, v26")
    A("v_bfe_u32 v24, v0, 1, 1")
    A("v_lshlrev_b32 v24, 2, v24")
    A("v_xor_b32 v26, 6, v24")
    A("v_lshlrev_b32 v26, 4, v26")
    A("v_add_u32 v26, 8, v26")
    A("v_lshl_add_u32 v3, v0, 7, v26")
    A("v_add_u32 v4, 0x10000, v3")
    A("s_waitcnt vmcnt(40)")
    for j in range(13):
        A(f"ds_write_b64 v{AD[j]}, {vr(WR[j],2)}")
        A(f"v_xor_b32 v{AD[j]}, 64, v{AD[j]}")
        A(f"ds_write_b64 v{AD[j]}, {vr(WR[j]+2,2)}")
    A("ds_write_b16 v3, v48")
    A("ds_write_b16 v3, v49 offset:32768")
    A("ds_write_b16 v4, v50")
    A("s_waitcnt lgkmcnt(0)")
    A("s_barrier")
    ST.stamp(4)
    A(f"v_and_b32 v14, 15, v{lane}")
    A("v_lshrrev_b32 v16, 2, v14")
    A("v_and_b32 v17, 3, v14")
    A(f"v_bfe_u32 v18, v{lane}, 4, 1")
    A("v_lshlrev_b32 v18, 1, v18")
    A("v_lshrrev_b32 v19, 1, v17")
    A("v_add_u32 v18, v18, v19")
    A("v_bfe_u32 v19, v16, 1, 1")
    A("v_lshlrev_b32 v19, 2, v19")
    A("v_xor_b32 v18, v18, v19")
    A("v_lshlrev_b32 v18, 4, v18")
    A("v_and_b32 v17, 1, v17")
    A("v_lshl_add_u32 v18, v17, 3, v18")
    A("v_lshl_add_u32 v16, v15, 3, v16")
    A("v_lshl_add_u32 v10, v16, 7, v18")
    A("v_xor_b32 v11, 64, v10")
    A("v_add_u32 v12, 0x10000, v10")
    A("v_add_u32 v13, 0x10000, v11")
    DK, DV = 224, 240
    for r in range(32):
        A(f"v_mov_b32 v{DK+r}, 0")
    WF = 28
    def rd(ks, b):
        off = ks*2048
        ak, av = (10, 11) if off + 512 < 65536 else (12, 13)
        if off + 512 >= 65536: off -= 65536
        return [f"ds_read_b64_tr_b16 {vr(WF+8*b,2)}, v{ak} offset:{off}",
                f"ds_read_b64_tr_b16 {vr(WF+8*b+2,2)}, v{ak} offset:{off+512}",
                f"ds_read_b64_tr_b16 {vr(WF+8*b+4,2)}, v{av} offset:{off}",
                f"ds_read_b64_tr_b16 {vr(WF+8*b+6,2)}, v{av} offset:{off+512}"]
    for x in rd(0, 0): A(x)
    for ks in range(40):
        b = ks % 2
        if ks < 39:
            for x in rd(ks+1, 1-b): A(x)
            A("s_waitcnt lgkmcnt(4)")
        else:
            A("s_waitcnt lgkmcnt(0)")
        if ks % 4 == 0:
            A(f"s_waitcnt vmcnt({36 - ks})")
        A(f"v_mfma_f32_32x32x16_bf16 {vr(DK,16)}, {vr(WF+8*b,4)}, {vr(XF+4*ks,4)}, {vr(DK,16)}")
        A(f"v_mfma_f32_32x32x16_bf16 {vr(DV,16)}, {vr(XF+4*ks,4)}, {vr(WF+8*b+4,4)}, {vr(DV,16)}")
    A("s_nop 15")
    A(f"s_mul_i32 s78, s21, {KVB}")
    A(f"s_add_u32 s78, s78, {WS_KVF}")
    A(f"v_lshlrev_b32 v16, 4, v{lane}")
    for r in range(0, 12, 2):
        A(f"v_cvt_pk_bf16_f32 v{44+r//2}, v{DK+r}, v{DK+r+1}")
    A(f"buffer_store_dwordx4 {vr(44,4)}, v16, s[16:19], s78 offen")
    A(f"v_mul_f32 v20, v{DK}, v{DK}")
    for r in range(1, 8):
        A(f"v_fmac_f32 v20, v{DK+r}, v{DK+r}")
    A(f"v_mul_f32 v21, v{DK+8}, v{DK+8}")
    for r in range(9, 12):
        A(f"v_fmac_f32 v21, v{DK+r}, v{DK+r}")
    A(f"v_cmp_gt_u32 vcc, 32, v{lane}")
    A("s_nop 1")
    A("v_cndmask_b32 v21, 0, v21, vcc")
    A("v_add_f32 v20, v20, v21")
    A("v_mov_b32 v21, v20")
    A("s_nop 1")
    A("v_permlane32_swap_b32 v20, v21")
    A("s_nop 1")
    A("v_add_f32 v20, v20, v21")
    for off in (0x041F, 0x081F, 0x101F, 0x201F, 0x401F):
        A(f"ds_swizzle_b32 v21, v20 offset:{off}")
        A("s_waitcnt lgkmcnt(0)")
        A("v_max_f32 v20, v20, v21")
    A(f"v_lshlrev_b32 v17, 3, v{lane}")
    A(f"v_cmp_gt_u32 vcc, 32, v{lane}")
    A("s_and_saveexec_b64 s[86:87], vcc")
    A(f"buffer_store_dwordx2 {vr(48,2)}, v17, s[16:19], s78 offen offset:3072")
    A("s_mov_b64 exec, s[86:87]")
    A("s_lshl_b32 s79, s21, 2")
    A(f"s_add_u32 s79, s79, {WS_KN}")
    A("v_mov_b32 v17, 0")
    A(f"v_cmp_eq_u32 vcc, 0, v{lane}")
    A("s_and_saveexec_b64 s[86:87], vcc")
    A("buffer_store_dword v20, v17, s[16:19], s79 offen")
    A("s_mov_b64 exec, s[86:87]")
    A(f"v_and_b32 v14, 31, v{lane}")
    A("s_lshl_b32 s79, s21, 7")
    A(f"s_add_u32 s79, s79, {WS_G}")
    A("v_lshlrev_b32 v17, 4, v15")
    A("v_cmp_eq_u32 vcc, 20, v14")
    A("s_and_saveexec_b64 s[86:87], vcc")
    for gi in range(4):
        A(f"buffer_store_dwordx4 {vr(DV+4*gi,4)}, v17, s[16:19], s79 offen offset:{gi*32}")
    A("s_nop 1")
    for r in range(16):
        A(f"v_mov_b32 v{DV+r}, 1.0")
    A("s_mov_b64 exec, s[86:87]")
    for r in range(0, 16, 2):
        A(f"v_cvt_pk_bf16_f32 v{52+r//2}, v{DV+r}, v{DV+r+1}")
    A(f"buffer_store_dwordx4 {vr(52,4)}, v16, s[16:19], s78 offen offset:1024")
    A(f"buffer_store_dwordx4 {vr(56,4)}, v16, s[16:19], s78 offen offset:2048")
    A("s_waitcnt vmcnt(0) lgkmcnt(0)")
    A("s_barrier")

def xform_role(A, N, P):
    lane = 63
    A("s_cmp_lt_u32 s21, 64")
    A("s_cselect_b32 s24, 64, 32")
    A("s_movk_i32 s26, 340")
    A("s_cselect_b32 s26, 128, s26")
    A("s_add_u32 s25, s21, 64")
    A("s_cmp_lt_u32 s21, 64")
    A("s_cselect_b32 s25, s21, s25")
    srd(A, 8, P['w2'], 1966080)
    srd(A, 12, P['wo'], 819200)
    A("s_lshl_b32 s27, s20, 15")
    A(f"v_lshrrev_b32 v14, 4, v{lane}")
    A(f"v_and_b32 v15, 15, v{lane}")
    A("s_movk_i32 s39, 1280")
    A("v_mul_lo_u32 v16, v14, s39")
    A("v_lshl_add_u32 v16, v15, 4, v16")
    A(f"v_lshrrev_b32 v17, 4, v{lane}")
    A(f"v_and_b32 v18, 15, v{lane}")
    A("v_lshrrev_b32 v19, 2, v18")
    A("v_and_b32 v18, 3, v18")
    A("v_lshl_add_u32 v17, v17, 3, v19")
    A("v_lshlrev_b32 v17, 8, v17")
    A("v_lshl_add_u32 v17, v18, 3, v17")
    A("v_add_u32 v17, s27, v17")
    A(f"v_lshlrev_b32 v18, 4, v{lane}")
    loop = A.uid("xf_loop"); done = A.uid("xf_done"); isw2 = A.uid("xf_w2"); go = A.uid("xf_go")
    iss = A.uid("xf_iss"); issd = A.uid("xf_issd"); pr = A.uid("xf_pr")
    A.label(loop)
    A("s_cmp_ge_u32 s25, s26")
    A(f"s_cbranch_scc1 {done}")
    A("s_mov_b32 s36, s25")
    A("s_mov_b32 s37, 0")
    A("s_mov_b32 s38, s27")
    A.label(iss)
    A("s_cmp_lt_u32 s25, 240")
    A(f"s_cbranch_scc1 {isw2}")
    A("s_sub_u32 s28, s25, 240")
    A("s_mul_i32 s29, s28, 52429")
    A("s_lshr_b32 s29, s29, 18")
    A("s_mul_i32 s30, s29, 5")
    A("s_sub_u32 s30, s28, s30")
    for kg in range(4):
        A(f"s_lshl_b32 s31, s29, 2")
        A(f"s_add_u32 s31, s31, {kg}")
        A("s_mul_i32 s32, s31, 52429")
        A("s_lshr_b32 s32, s32, 18")
        A("s_mul_i32 s33, s32, 5")
        A("s_sub_u32 s33, s31, s33")
        A("s_lshr_b32 s34, s33, 1")
        A("s_mul_i32 s34, s34, 20")
        A("s_and_b32 s35, s33, 1")
        A("s_lshl_b32 s35, s35, 2")
        A("s_add_u32 s34, s34, s35")
        A("s_cmp_eq_u32 s33, 4")
        A("s_cselect_b32 s34, 16, s34")
        A("s_cselect_b32 s35, 20, 8")
        A("s_mul_i32 s32, s32, 40")
        A("s_add_u32 s34, s34, s32")
        A("s_add_u32 s35, s35, s34")
        A(f"s_mul_i32 s{64+2*kg}, s34, 1280")
        A(f"s_mul_i32 s{64+2*kg+1}, s35, 1280")
    A("s_mov_b32 s72, s12")
    A("s_mov_b32 s73, s13")
    A("s_mov_b32 s74, s14")
    A("s_mov_b32 s75, 0x20000")
    A(f"s_branch {go}")
    A.label(isw2)
    A("s_mul_i32 s29, s25, 52429")
    A("s_lshr_b32 s29, s29, 18")
    A("s_mul_i32 s30, s29, 5")
    A("s_sub_u32 s30, s25, s30")
    A("s_lshl_b32 s31, s29, 5")
    for kg, R in enumerate([0, 16, 4, 20]):
        A(f"s_add_u32 s34, s31, {R}")
        A(f"s_mul_i32 s{64+2*kg}, s34, 1280")
        A(f"s_add_u32 s{64+2*kg+1}, s{64+2*kg}, {8*1280}")
    A("s_mov_b32 s72, s8")
    A("s_mov_b32 s73, s9")
    A("s_mov_b32 s74, s10")
    A("s_mov_b32 s75, 0x20000")
    A.label(go)
    A("s_lshl_b32 s31, s30, 8")
    for n in range(8):
        A(f"s_add_u32 s{64+n}, s{64+n}, s31")
        A(f"s_add_u32 m0, s38, {n*1024}")
        A("s_nop 0")
        A(f"buffer_load_dwordx4 v16, s[72:75], s{64+n} offen lds")
    A("s_add_u32 s38, s38, 8192")
    A("s_add_u32 s37, s37, 1")
    A("s_add_u32 s25, s25, s24")
    A("s_cmp_ge_u32 s25, s26")
    A(f"s_cbranch_scc1 {issd}")
    A("s_cmp_lt_u32 s37, 4")
    A(f"s_cbranch_scc1 {iss}")
    A.label(issd)
    A("s_waitcnt vmcnt(0)")
    A("v_mov_b32 v19, v17")
    A.label(pr)
    for cb in range(8):
        A(f"ds_read_b64_tr_b16 {vr(64+4*cb,2)}, v19 offset:{cb*32}")
        A(f"ds_read_b64_tr_b16 {vr(64+4*cb+2,2)}, v19 offset:{cb*32+1024}")
    A("s_lshl_b32 s76, s36, 13")
    A(f"s_add_u32 s76, s76, {WS_W2F}")
    for cb in range(8):
        A(f"s_waitcnt lgkmcnt({14 - 2*cb})")
        A(f"s_add_u32 s77, s76, {cb*1024}")
        A(f"buffer_store_dwordx4 {vr(64+4*cb,4)}, v18, s[16:19], s77 offen")
    A("v_add_u32 v19, 8192, v19")
    A("s_add_u32 s36, s36, s24")
    A("s_sub_u32 s37, s37, 1")
    A("s_cmp_gt_u32 s37, 0")
    A(f"s_cbranch_scc1 {pr}")
    A(f"s_branch {loop}")
    A.label(done)
```

```python
from asmlib import *
import struct
def f2u(x): return struct.unpack("<I", struct.pack("<f", x))[0]

K2_LDS = 32768
MTHRESH = 40.0

LANE = 1
Q1 = 8
Q2 = 24
RING = 40
SB = 104
TT = 136
PP = 144
OO = 152
MISC = 216

def K1r(b): return RING + 16*b
def K2r(b): return RING + 16*b + 4
def V1r(b): return RING + 16*b + 8
def V2r(b): return RING + 16*b + 12

def mfma(d, a_, b_, c):
    return f"v_mfma_f32_32x32x16_bf16 {vr(d,16)}, {vr(a_,4)}, {vr(b_,4)}, {c}"

def kv_loads(slot):
    return [f"buffer_load_dwordx4 {vr(K1r(slot),4)}, v2, s[16:19], s30 offen",
            f"buffer_load_dwordx2 {vr(K2r(slot),2)}, v3, s[16:19], s30 offen offset:3072",
            f"buffer_load_dwordx4 {vr(V1r(slot),4)}, v2, s[16:19], s30 offen offset:1024",
            f"buffer_load_dwordx4 {vr(V2r(slot),4)}, v2, s[16:19], s30 offen offset:2048"]

def exp_group(A, sbuf, g):
    S = SB + 16*sbuf + 4*g
    T = TT + 4*(g & 1)
    for e in range(4):
        A(f"v_exp_f32 v{T+e}, v{S+e}")
    A(f"v_cvt_pk_bf16_f32 v{PP+2*g}, v{T}, v{T+1}")
    A(f"v_cvt_pk_bf16_f32 v{PP+2*g+1}, v{T+2}, v{T+3}")

def period(A, j, do_qk=True, do_exp=True, do_pv2=True, do_pv1=True, pre=None, fill=None):
    h = j % 4; t = (j // 4) % 4
    sb = j % 2
    jm1 = (j - 1); jm2 = (j - 2)
    h1, t1 = jm1 % 4, (jm1 // 4) % 4
    h2, t2 = jm2 % 4, (jm2 // 4) % 4
    fill = fill or {}
    for x in (pre or []): A(x)
    if do_qk: A(mfma(SB+16*sb, K1r(t), Q1+4*h, "0"))
    if do_exp: exp_group(A, 1-sb, 0)
    for x in fill.get(0, []): A(x)
    if do_qk: A(mfma(SB+16*sb, K2r(t), Q2+4*h, vr(SB+16*sb,16)))
    if do_exp: exp_group(A, 1-sb, 1)
    for x in fill.get(1, []): A(x)
    if do_pv2: A(mfma(OO+16*h2, V2r(t2), PP+4, vr(OO+16*h2,16)))
    if do_exp: exp_group(A, 1-sb, 2)
    for x in fill.get(2, []): A(x)
    if do_pv1: A(mfma(OO+16*h1, V1r(t1), PP, vr(OO+16*h1,16)))
    if do_exp: exp_group(A, 1-sb, 3)
    for x in fill.get(3, []): A(x)

def k2():
    A = Asm()
    N = "k2_kernel"
    A.raw(khead(N))
    ST = Stamps(A, 88, 7)
    A("s_cmp_ge_u32 s2, 256")
    A(f"s_cbranch_scc1 {N}_end")
    ST.stamp(0)
    A("s_load_dwordx2 s[60:61], s[0:1], 96")
    A("v_lshrrev_b32 v4, 6, v0")
    A(f"v_and_b32 v{LANE}, 63, v0")
    A("v_readfirstlane_b32 s20, v4")
    A("s_and_b32 s21, s2, 7")
    A("s_lshr_b32 s22, s2, 3")
    A(f"v_lshlrev_b32 v2, 4, v{LANE}")
    A(f"v_and_b32 v5, 31, v{LANE}")
    A("v_lshlrev_b32 v3, 3, v5")
    A(f"v_lshrrev_b32 v6, 5, v{LANE}")
    A("v_lshlrev_b32 v7, 28, v6")
    A("v_add_u32 v7, v7, v3")
    A("s_and_b32 s23, s20, 1")
    A("s_lshr_b32 s24, s20, 1")
    A("s_lshl_b32 s25, s22, 1")
    A("s_add_u32 s25, s25, s23")
    A("s_lshl_b32 s26, s21, 8")
    A("s_add_u32 s26, s26, s25")
    A("s_mul_i32 s26, s26, 1280")
    A(f"s_add_u32 s26, s26, {WS_QF}")
    A("s_lshl_b32 s30, s24, 5")
    A(f"s_mul_i32 s30, s30, {KVB}")
    A(f"s_add_u32 s30, s30, {WS_KVF}")
    A(f"s_mov_b32 s31, {WS_KN}")
    A(f"v_lshlrev_b32 v8, 2, v{LANE}")
    A("s_waitcnt lgkmcnt(0)")
    srd(A, 16, 60, WS_SIZE)
    A(f"buffer_load_dword v{MISC}, v8, s[16:19], s31 offen")
    for h in range(4):
        A(f"buffer_load_dwordx4 {vr(Q1+4*h,4)}, v2, s[16:19], s26 offen")
        A(f"buffer_load_dwordx2 {vr(Q2+4*h,2)}, v7, s[16:19], s26 offen offset:1024")
        if h < 3: A(f"s_add_u32 s26, s26, {64*1280}")
    for b in range(3):
        for x in kv_loads(b): A(x)
        A(f"s_add_u32 s30, s30, {KVB}")
    ST.stamp(1)
    for b in range(4):
        A(f"v_mov_b32 v{K2r(b)+2}, 0x3f803f80")
        A(f"v_mov_b32 v{K2r(b)+3}, 0x00003f80")
    for r in range(8):
        A(f"v_mov_b32 v{V1r(3)+r}, 0")
    for r in range(16):
        A(f"v_mov_b32 v{SB+16+r}, 0")
    for r in range(8):
        A(f"v_mov_b32 v{PP+r}, 0")
    for r in range(64):
        A(f"v_mov_b32 v{OO+r}, 0")
    M = MISC
    A("s_waitcnt vmcnt(20)")
    for off in (0x041F, 0x081F, 0x101F, 0x201F, 0x401F):
        A(f"ds_swizzle_b32 v{M+1}, v{M} offset:{off}")
        A("s_waitcnt lgkmcnt(0)")
        A(f"v_max_f32 v{M}, v{M}, v{M+1}")
    A(f"v_mov_b32 v{M+1}, v{M}")
    A("s_nop 1")
    A(f"v_permlane32_swap_b32 v{M}, v{M+1}")
    A("s_nop 1")
    A(f"v_max_f32 v{M}, v{M}, v{M+1}")
    A("s_waitcnt vmcnt(12)")
    ST.stamp(2)
    for h in range(4):
        n = M + 4 + h
        t = M + 2
        first = True
        for r in range(4):
            q = Q1 + 4*h + r
            A(f"v_lshlrev_b32 v{t}, 16, v{q}")
            A(f"v_and_b32 v{t+1}, 0xffff0000, v{q}")
            if first: A(f"v_mul_f32 v{n}, v{t}, v{t}")
            else: A(f"v_fmac_f32 v{n}, v{t}, v{t}")
            first = False
            A(f"v_fmac_f32 v{n}, v{t+1}, v{t+1}")
        for r in range(2):
            q = Q2 + 4*h + r
            A(f"v_lshlrev_b32 v{t}, 16, v{q}")
            A(f"v_and_b32 v{t+1}, 0xffff0000, v{q}")
            A(f"v_fmac_f32 v{n}, v{t}, v{t}")
            A(f"v_fmac_f32 v{n}, v{t+1}, v{t+1}")
        A(f"v_mov_b32 v{t}, v{n}")
        A("s_nop 1")
        A(f"v_permlane32_swap_b32 v{n}, v{t}")
        A("s_nop 1")
        A(f"v_add_f32 v{n}, v{n}, v{t}")
        A(f"v_mul_f32 v{n}, v{n}, v{M}")
        A(f"v_sqrt_f32 v{n}, v{n}")
    A("s_nop 0")
    A(f"v_max_f32 v{M+2}, v{M+4}, v{M+5}")
    A(f"v_max3_f32 v{M+2}, v{M+2}, v{M+6}, v{M+7}")
    A(f"v_mov_b32 v{M+3}, {f2u(MTHRESH)}")
    A(f"v_cmp_nle_f32 vcc, v{M+2}, v{M+3}")
    A("s_nop 1")
    A("s_cmp_lg_u64 vcc, 0")
    A(f"s_cbranch_scc0 {N}_mok")
    for h in range(4):
        A(f"v_mov_b32 v{Q2+4*h+2}, 0")
        A(f"v_mov_b32 v{Q2+4*h+3}, 0")
        A(f"v_mov_b32 v{M+4+h}, 0xff800000")
    A(f"s_mov_b32 s32, {WS_KVF}")
    A("s_mov_b32 s33, 64")
    A.label(f"{N}_fb_loop")
    b = 3
    A(f"buffer_load_dwordx4 {vr(K1r(b),4)}, v2, s[16:19], s32 offen")
    A(f"buffer_load_dwordx2 {vr(K2r(b),2)}, v3, s[16:19], s32 offen offset:3072")
    A("s_waitcnt vmcnt(0)")
    for h in range(4):
        A(mfma(SB, K1r(b), Q1+4*h, "0"))
        A(mfma(SB, K2r(b), Q2+4*h, vr(SB,16)))
        A("s_nop 15")
        for r in range(0, 16, 2):
            A(f"v_max3_f32 v{M+4+h}, v{M+4+h}, v{SB+r}, v{SB+r+1}")
    A(f"s_add_u32 s32, s32, {KVB}")
    A("s_sub_u32 s33, s33, 1")
    A("s_cmp_lg_u32 s33, 0")
    A(f"s_cbranch_scc1 {N}_fb_loop")
    for h in range(4):
        n = M + 4 + h; t = M + 2
        A(f"v_mov_b32 v{t}, v{n}")
        A("s_nop 1")
        A(f"v_permlane32_swap_b32 v{n}, v{t}")
        A("s_nop 1")
        A(f"v_max_f32 v{n}, v{n}, v{t}")
    A.label(f"{N}_mok")
    A(f"v_cmp_gt_u32 vcc, 32, v{LANE}")
    for h in range(4):
        n = M + 4 + h; t = M + 2
        A(f"v_sub_f32 v{n}, 0, v{n}")
        A(f"v_and_b32 v{t}, 0xffff0000, v{n}")
        A(f"v_sub_f32 v{n}, v{n}, v{t}")
        A(f"v_and_b32 v{t+1}, 0xffff0000, v{n}")
        A(f"v_sub_f32 v{n}, v{n}, v{t+1}")
        A(f"v_lshrrev_b32 v{t}, 16, v{t}")
        A(f"v_or_b32 v{t}, v{t}, v{t+1}")
        A(f"v_lshrrev_b32 v{n}, 16, v{n}")
        A(f"v_cndmask_b32 v{Q2+4*h+2}, 0, v{t}, vcc")
        A(f"v_cndmask_b32 v{Q2+4*h+3}, 0, v{n}, vcc")
    ST.stamp(3)
    A("s_mov_b32 s33, 8")
    A.label(f"{N}_loop")
    for j in range(16):
        t = j // 4
        pre = []
        fill = {}
        if j % 4 == 0:
            pre = ["s_waitcnt vmcnt(8)"]
        if j % 4 == 2:
            L = kv_loads((t + 3) % 4)
            fill = {0: L[0:1], 1: L[1:2], 2: L[2:3], 3: L[3:4] + [f"s_add_u32 s30, s30, {KVB}"]}
        period(A, j, pre=pre, fill=fill)
    A("s_sub_u32 s33, s33, 1")
    A("s_cmp_lg_u32 s33, 0")
    A(f"s_cbranch_scc1 {N}_loop")
    period(A, 16, do_qk=False)
    A("s_nop 1")
    period(A, 17, do_qk=False, do_exp=False, do_pv1=False)
    ST.stamp(4)
    A("s_nop 15")
    A("s_lshl_b32 s34, s20, 13")
    A("s_xor_b32 s35, s20, 2")
    A("s_lshl_b32 s35, s35, 13")
    A(f"v_lshlrev_b32 v8, 2, v{LANE}")
    A("v_add_u32 v9, s34, v8")
    A("v_add_u32 v10, s35, v8")
    A("s_cmp_eq_u32 s24, 0")
    A(f"s_cbranch_scc1 {N}_kh0")
    for hh in range(2):
        for r in range(12):
            A(f"ds_write_b32 v9, v{OO+16*hh+r} offset:{(hh*12+r)*256}")
    for hh in range(2):
        for r in range(12):
            A(f"v_mov_b32 v{OO+16*hh+r}, v{OO+32+16*hh+r}")
    A(f"s_branch {N}_xch")
    A.label(f"{N}_kh0")
    for hh in range(2):
        for r in range(12):
            A(f"ds_write_b32 v9, v{OO+32+16*hh+r} offset:{(hh*12+r)*256}")
    A.label(f"{N}_xch")
    A("s_waitcnt lgkmcnt(0)")
    A("s_barrier")
    for hh in range(2):
        for r in range(12):
            A(f"ds_read_b32 v{OO+32+16*hh+r}, v10 offset:{(hh*12+r)*256}")
    A("v_lshrrev_b32 v11, 4, v5")
    A("s_movk_i32 s36, 20480")
    A("v_mul_lo_u32 v11, v11, s36")
    A("v_and_b32 v12, 15, v5")
    A("v_lshl_add_u32 v11, v12, 4, v11")
    A("v_lshl_add_u32 v12, v6, 8, v11")
    A("s_lshl_b32 s37, s21, 1")
    A("s_add_u32 s37, s37, s24")
    A("s_mul_i32 s37, s37, 1280")
    A("s_mul_i32 s38, s25, 40960")
    A("s_add_u32 s37, s37, s38")
    A(f"s_add_u32 s37, s37, {WS_OF}")
    A("s_waitcnt lgkmcnt(0)")
    for hh in range(2):
        o = OO + 16*hh
        for r in range(0, 12, 2):
            A(f"v_pk_add_f32 {vr(o+r,2)}, {vr(o+r,2)}, {vr(o+32+r,2)}")
    for hh in range(2):
        o = OO + 16*hh
        l = M + hh*2
        A(f"v_mov_b32 v{l}, v{o+8}")
        A(f"v_mov_b32 v{l+1}, v{o+8}")
        A("s_nop 1")
        A(f"v_permlane32_swap_b32 v{l}, v{l+1}")
        A("s_nop 1")
        A(f"v_rcp_f32 v{l}, v{l+1}")
        A("s_nop 0")
        for r in range(12):
            A(f"v_mul_f32 v{o+r}, v{o+r}, v{l}")
        for r in range(0, 8, 2):
            A(f"v_cvt_pk_bf16_f32 v{M+8+4*hh+r//2}, v{o+r}, v{o+r+1}")
        A(f"v_cvt_pk_bf16_f32 v{M+16+2*hh}, v{o+8}, v{o+9}")
        A(f"v_cvt_pk_bf16_f32 v{M+16+2*hh+1}, v{o+10}, v{o+11}")
        A(f"buffer_store_dwordx4 {vr(M+8+4*hh,4)}, v12, s[16:19], s37 offen offset:{hh*512}")
    A(f"v_cmp_gt_u32 vcc, 32, v{LANE}")
    A("s_and_saveexec_b64 s[40:41], vcc")
    A(f"buffer_store_dwordx4 {vr(M+16,4)}, v11, s[16:19], s37 offen offset:1024")
    A("s_mov_b64 exec, s[40:41]")
    if PROF:
        A("s_waitcnt vmcnt(0)")
        ST.stamp(5)
        ST.stamp(6)
        ST.dump(16, koff=0x10000, vt=MISC+30)
    A.label(f"{N}_end")
    A("s_endpgm")
    return A.text(), kdesc(N, 256, 102)
```

```python
from asmlib import *
import struct
def f2u(x): return struct.unpack("<I", struct.pack("<f", x))[0]
LOG2E = 1.4426950408889634

K3_LDS = 81920
ACC = 16
RING = 96

def k3():
    A = Asm()
    N = "k3_kernel"
    A.raw(khead(N))
    ST = Stamps(A, 88, 7)
    A("s_cmp_ge_u32 s2, 256")
    A(f"s_cbranch_scc1 {N}_end")
    ST.stamp(0)
    A("s_load_dwordx2 s[60:61], s[0:1], 96")
    A("s_load_dwordx2 s[62:63], s[0:1], 80")
    A("v_lshrrev_b32 v4, 6, v0")
    A("v_and_b32 v1, 63, v0")
    A("v_readfirstlane_b32 s20, v4")
    A("s_and_b32 s21, s2, 7")
    A("s_lshr_b32 s22, s2, 3")
    A("s_lshr_b32 s23, s21, 1")
    A("s_lshl_b32 s23, s23, 3")
    A("s_and_b32 s24, s22, 7")
    A("s_add_u32 s23, s23, s24")
    A("s_and_b32 s24, s21, 1")
    A("s_lshl_b32 s24, s24, 2")
    A("s_lshr_b32 s25, s22, 3")
    A("s_add_u32 s24, s24, s25")
    A("v_lshlrev_b32 v2, 4, v1")
    A("s_cmp_eq_u32 s20, 0")
    A(f"s_cbranch_scc0 {N}_ffn")
    A("s_movk_i32 s26, 20480")
    A(f"s_mov_b32 s27, {WS_OF}")
    A(f"s_mov_b32 s28, {WS_WOF}")
    A("s_mov_b32 s33, 5")
    A(f"s_branch {N}_par")
    A.label(f"{N}_ffn")
    A("s_mov_b32 s26, 49152")
    A("s_sub_u32 s29, s20, 1")
    A("s_lshl_b32 s29, s29, 4")
    A("s_lshl_b32 s27, s29, 10")
    A(f"s_add_u32 s27, s27, {WS_HF}")
    A("s_mul_i32 s28, s29, 40960")
    A(f"s_add_u32 s28, s28, {WS_W2F}")
    A("s_mov_b32 s33, 4")
    A.label(f"{N}_par")
    A("s_lshl_b32 s30, s23, 2")
    A("s_mul_i32 s30, s30, s26")
    A("s_add_u32 s40, s27, s30")
    for i in range(1, 4):
        A(f"s_add_u32 s{40+i}, s{40+i-1}, s26")
    A("s_mul_i32 s30, s24, 5120")
    A("s_add_u32 s44, s28, s30")
    A("s_add_u32 s45, s44, 4096")
    A("s_lshl_b32 s31, s23, 8")
    A(f"s_add_u32 s31, s31, {WS_G}")
    A("v_and_b32 v3, 15, v1")
    A("v_lshlrev_b32 v5, 2, v3")
    A("s_waitcnt lgkmcnt(0)")
    srd(A, 16, 60, WS_SIZE)
    srd(A, 12, 62, 2621440)
    for rb in range(4):
        A(f"buffer_load_dword v{8+rb}, v5, s[16:19], s31 offen offset:{rb*64}")
    def loads(slot):
        base = RING + 36*slot
        L = []
        for cb in range(5):
            L.append(f"buffer_load_dwordx4 {vr(base+16+4*cb,4)}, v2, s[16:19], s{44 if cb<4 else 45} offen offset:{(cb%4)*1024}")
        for rb in range(4):
            L.append(f"buffer_load_dwordx4 {vr(base+4*rb,4)}, v2, s[16:19], s{40+rb} offen")
        U = [f"s_add_u32 s{40+rb}, s{40+rb}, 1024" for rb in range(4)] + ["s_add_u32 s44, s44, 40960", "s_add_u32 s45, s45, 40960"]
        return L, U
    for slot in range(3):
        L, U = loads(slot)
        for x in L + U: A(x)
    ST.stamp(1)
    for r in range(80):
        A(f"v_mov_b32 v{ACC+r}, 0")
    A("s_waitcnt vmcnt(27)")
    A(f"s_mov_b32 s46, {f2u(-LOG2E)}")
    for rb in range(4):
        A(f"v_mul_f32 v{8+rb}, s46, v{8+rb}")
    for rb in range(4):
        A(f"v_exp_f32 v{8+rb}, v{8+rb}")
    A("s_nop 0")
    for rb in range(4):
        A(f"v_add_f32 v{8+rb}, 1.0, v{8+rb}")
    for rb in range(4):
        A(f"v_rcp_f32 v{8+rb}, v{8+rb}")
    A("s_nop 0")
    A("s_cmp_eq_u32 s20, 0")
    A(f"s_cbranch_scc1 {N}_g")
    for rb in range(4):
        A(f"v_sub_f32 v{8+rb}, 1.0, v{8+rb}")
    A.label(f"{N}_g")
    ST.stamp(2)
    A.label(f"{N}_loop")
    for st in range(4):
        L, U = loads((st + 3) % 4)
        A("s_waitcnt vmcnt(18)")
        base = RING + 36*st
        k = 0
        for rb in range(4):
            for cb in range(5):
                d = ACC + (rb*5+cb)*4
                A(f"v_mfma_f32_16x16x32_bf16 {vr(d,4)}, {vr(base+16+4*cb,4)}, {vr(base+4*rb,4)}, {vr(d,4)}")
                if k % 2 == 1 and k//2 < 9:
                    A(L[k//2])
                k += 1
        for x in U: A(x)
    A("s_sub_u32 s33, s33, 1")
    A("s_cmp_lg_u32 s33, 0")
    A(f"s_cbranch_scc1 {N}_loop")
    ST.stamp(3)
    A("s_nop 7")
    A("s_mul_i32 s34, s20, 20480")
    A("v_add_u32 v6, s34, v2")
    for rb in range(4):
        for cb in range(5):
            d = ACC + (rb*5+cb)*4
            for r in range(4):
                A(f"v_mul_f32 v{d+r}, v{d+r}, v{8+rb}")
            A(f"ds_write_b128 v6, {vr(d,4)} offset:{(rb*5+cb)*1024}")
    A("s_mul_i32 s34, s20, 5120")
    A("v_add_u32 v6, s34, v2")
    A("v_add_u32 v7, 40960, v6")
    A("s_waitcnt lgkmcnt(0)")
    A("s_barrier")
    for src in range(4):
        for cb in range(5):
            reg = ACC + (src*5+cb)*4
            av = 6 if src < 2 else 7
            A(f"ds_read_b128 {vr(reg,4)}, v{av} offset:{(src%2)*20480 + cb*1024}")
    A("s_lshl_b32 s35, s23, 6")
    A("s_lshl_b32 s36, s20, 4")
    A("s_add_u32 s35, s35, s36")
    A("s_mul_i32 s35, s35, 1280")
    A("s_mul_i32 s36, s24, 160")
    A("s_add_u32 s35, s35, s36")
    A("s_movk_i32 s36, 1280")
    A("v_mul_lo_u32 v12, v3, s36")
    A("v_lshrrev_b32 v13, 4, v1")
    A("v_lshl_add_u32 v12, v13, 3, v12")
    A("s_waitcnt lgkmcnt(0)")
    for cb in range(5):
        a0 = ACC + cb*4
        for src in range(1, 4):
            b0 = ACC + (src*5+cb)*4
            A(f"v_pk_add_f32 {vr(a0,2)}, {vr(a0,2)}, {vr(b0,2)}")
            A(f"v_pk_add_f32 {vr(a0+2,2)}, {vr(a0+2,2)}, {vr(b0+2,2)}")
        A(f"v_cvt_pk_bf16_f32 v{a0}, v{a0}, v{a0+1}")
        A(f"v_cvt_pk_bf16_f32 v{a0+1}, v{a0+2}, v{a0+3}")
        A(f"buffer_store_dwordx2 {vr(a0,2)}, v12, s[12:15], s35 offen offset:{cb*32}")
    if PROF:
        A("s_waitcnt vmcnt(0)")
        ST.stamp(4); ST.stamp(5); ST.stamp(6)
        ST.dump(16, koff=0x20000, vt=240)
    A.label(f"{N}_end")
    A("s_endpgm")
    return A.text(), kdesc(N, 256, 102)
```

```python
import sys, importlib
sys.path.insert(0, "gen")
from asmlib import *

HDR = open("gated_mix__grouped_kv_mqa__glu_gated_swiglu__prompt.s.ref").read().split("; Override launch geometry")[0]

def build(kernels, path):
    out = [HDR.rstrip("\n")]
    for (name, text, desc, grid, block, lds) in kernels:
        out.append(f"; @launch kernel={name} grid=({grid},1,1) block=({block},1,1) lds={lds}")
    out.append('.amdgcn_target "amdgcn-amd-amdhsa--gfx950"')
    out.append(".text")
    seen = set()
    descs = []
    for (name, text, desc, grid, block, lds) in kernels:
        if name in seen: continue
        seen.add(name)
        out.append(text)
        descs.append(desc)
    out.append('.section .rodata,"a"')
    out += descs
    s = "\n".join(out) + "\n"
    open(path, "w").write(s)
    return s

if __name__ == "__main__":
    which = sys.argv[1].split(",")
    path = sys.argv[2]
    ks = []
    for w in which:
        if w == "k1":
            import k1
            t, d = k1.k1()
            ks.append(("k1_kernel", t, d, 256, 256, k1.K1_LDS))
        elif w == "k2":
            import k2
            t, d = k2.k2()
            ks.append(("k2_kernel", t, d, 256, 256, k2.K2_LDS))
        elif w == "k3":
            import k3
            t, d = k3.k3()
            ks.append(("k3_kernel", t, d, 256, 256, k3.K3_LDS))
    s = build(ks, path)
    print("wrote", path, len(s), "bytes", s.count("\n"), "lines")
```
